```python
import torch

def _softmax(x, axis=-1):
    return torch.softmax(x, dim=axis)
def _gelu(x):
    return torch.nn.functional.gelu(x, approximate="tanh")
def _silu(x):
    return torch.nn.functional.silu(x)
def _sigmoid(x):
    return torch.sigmoid(x)
def _layernorm(x, axis=-1, eps=1e-5):
    m = x.mean(dim=axis, keepdim=True)
    v = x.var(dim=axis, keepdim=True, unbiased=False)
    return (x - m) / torch.sqrt(v + eps)
def _scatter_add(tgt, idx, src, axis=0):
    return tgt.clone().index_add_(axis, idx, src)
def _segment_sum(src, seg, n):
    out = torch.zeros((n,) + src.shape[1:], dtype=src.dtype)
    return out.index_add_(0, seg, src)
def _pad(x, pw):
    flat = tuple(v for pair in reversed(pw) for v in pair)
    return torch.nn.functional.pad(x, flat)

kernel_name = 'recurrent_scan__sliding_block_cached__moe_arch_mod__prompt'

def setup_inputs():

    _w = (lambda a: (lambda t: t.to(torch.bfloat16) if t.is_floating_point() else t)(torch.as_tensor(a)))
    def _A_setup():
        B, Sq, D = 1, 2048, 1024
        Hq, Hkv, Sk, Dh = 32, 4, 2048, 128
        assert Hq % Hkv == 0, (Hq, Hkv)
        return {
            "x": _w((lambda *s: torch.randn(*s, dtype=torch.bfloat16) * 0.05)(B, Sq, D)),
            "k_cache": _w((lambda *s: torch.randn(*s, dtype=torch.bfloat16) * 0.8)(B, Hkv, Sk, Dh)),
            "v_cache": _w((lambda *s: torch.randn(*s, dtype=torch.bfloat16) * 0.2)(B, Hkv, Sk, Dh)),
            "wq": _w((lambda *s: torch.randn(*s, dtype=torch.bfloat16) * 0.8)(D, Hq * Dh) * (D ** -0.5)),
            "wo": _w((lambda *s: torch.randn(*s, dtype=torch.bfloat16) * 0.2)(Hq * Dh, D) * ((Hq * Dh) ** -0.5)),
        }
    _A_in = _A_setup()

    def _B_setup():
        B, S, D, F, C = 1, 2048, 1024, 3584, 1
        return {
            "x": _w((lambda *s: torch.randn(*s, dtype=torch.bfloat16) * 0.05)(B, S, D)),
            "w_r": _w((lambda *s: torch.randn(*s, dtype=torch.bfloat16) * 0.2)(D)),
            "w_gate": _w((lambda *s: torch.randn(*s, dtype=torch.bfloat16) * 0.1)(D, F)),
            "w_up": _w((lambda *s: torch.randn(*s, dtype=torch.bfloat16) * 0.1)(D, F)),
            "w_down": _w((lambda *s: torch.randn(*s, dtype=torch.bfloat16) * 0.1)(F, D)),
        }
    _B_in = _B_setup()

    return {
        "A_x": _A_in["x"],
        "A_k_cache": _A_in["k_cache"],
        "A_v_cache": _A_in["v_cache"],
        "A_wq": _A_in["wq"],
        "A_wo": _A_in["wo"],
        "B_x": _B_in["x"],
        "B_w_r": _B_in["w_r"],
        "B_w_gate": _B_in["w_gate"],
        "B_w_up": _B_in["w_up"],
        "B_w_down": _B_in["w_down"],
    }

def reference(A_x, A_k_cache, A_v_cache, A_wq, A_wo, B_x, B_w_r, B_w_gate, B_w_up, B_w_down):
    def _A_ref(x, k_cache, v_cache, wq, wo):
        B, Sq, D = x.shape
        Hq, Dh = 32, 128
        Hkv, Sk = k_cache.shape[1], k_cache.shape[2]
        W = min(4096, max(256, Sk // 4))
        rep = Hq // Hkv
        q = (lambda x, *d: x.permute(*d))((x @ wq).reshape(B, Sq, Hq, Dh), 0, 2, 1, 3)
        k = (lambda x, n, axis: torch.repeat_interleave(x, n, dim=axis))(k_cache[:, :, Sk - W:, :], rep, axis=1)
        v = (lambda x, n, axis: torch.repeat_interleave(x, n, dim=axis))(v_cache[:, :, Sk - W:, :], rep, axis=1)
        scores = torch.einsum("bhqd,bhkd->bhqk", q, k) * (Dh ** -0.5)
        p = _softmax(scores, axis=-1)
        o = torch.einsum("bhqk,bhkd->bhqd", p, v)
        return (lambda x, *d: x.permute(*d))(o, 0, 2, 1, 3).reshape(B, Sq, Hq * Dh) @ wo

    def _B_ref(x, w_r, w_gate, w_up, w_down):
        B, S, D = x.shape
        C = 1
        r = x @ w_r
        idx = torch.argsort(-r, axis=-1)[:, :C]
        idx_e = (lambda x, n, axis: torch.repeat_interleave(x, n, dim=axis))(idx.reshape(B, C, 1), D, axis=2)
        x_sel = (lambda x, i, axis: torch.take_along_dim(x, i, dim=axis))(x, idx_e, axis=1)
        g = _silu(x_sel @ w_gate)
        u = x_sel @ w_up
        y = (g * u) @ w_down
        r_sel = _sigmoid((lambda x, i, axis: torch.take_along_dim(x, i, dim=axis))(r, idx, axis=1))
        y = y * r_sel.reshape(B, C, 1)
        b_off = (torch.arange(B) * S).reshape(B, 1)
        flat_idx = (idx + b_off).reshape(B * C)
        zero = (x * 0.0).reshape(B * S, D)
        upd = _scatter_add(zero, flat_idx, y.reshape(B * C, D), axis=0)
        return x + upd.reshape(B, S, D)

    x = A_x
    xn = _layernorm(x, axis=-1)
    s = _A_ref(xn, A_k_cache, A_v_cache, A_wq, A_wo)
    g = _silu(_B_ref(xn, B_w_r, B_w_gate, B_w_up, B_w_down))
    return x + s * g
```

```python
import re

REG_RE = re.compile(r'^(-|abs\()?([vas])(\d+)\)?$')
RANGE_RE = re.compile(r'^(-)?([vas])\[(\d+):(\d+)\]$')

TRANS = ('v_exp_f32', 'v_log_f32', 'v_rcp_f32', 'v_rsq_f32', 'v_sqrt_f32', 'v_sin_f32', 'v_cos_f32',
         'v_rcp_iflag_f32')


def parse_operand(op):
    op = op.strip()
    m = REG_RE.match(op)
    if m:
        return [(m.group(2), int(m.group(3)))]
    m = RANGE_RE.match(op)
    if m:
        return [(m.group(2), i) for i in range(int(m.group(3)), int(m.group(4)) + 1)]
    if op == 'vcc':
        return [('s', 106), ('s', 107)]
    if op == 'vcc_lo':
        return [('s', 106)]
    if op == 'vcc_hi':
        return [('s', 107)]
    if op == 'exec':
        return [('s', 126), ('s', 127)]
    if op == 'exec_lo':
        return [('s', 126)]
    if op == 'exec_hi':
        return [('s', 127)]
    if op == 'm0':
        return [('s', 124)]
    return []


class Ins:
    __slots__ = ('text', 'mn', 'cls', 'w', 'r', 'ra', 'rb', 'rc', 'passes', 'states', 'dpp', 'label', 'target',
                 'stdata', 'lds_dma', 'lanesel')

    def __init__(self, text):
        self.text = text
        self.label = None
        self.target = None
        self.w = set()
        self.r = set()
        self.ra = self.rb = self.rc = ()
        self.passes = 0
        self.states = 1
        self.dpp = False
        self.stdata = set()
        self.lds_dma = False
        self.lanesel = set()
        t = text.split(';')[0].strip()
        if t.endswith(':'):
            self.label = t[:-1]
            self.mn = ''
            self.cls = 'LABEL'
            self.states = 0
            return
        if t == '' or t.startswith('.'):
            self.mn = ''
            self.cls = 'DIR'
            self.states = 0
            return
        parts = t.split(None, 1)
        mn = parts[0]
        self.mn = mn
        rest = parts[1] if len(parts) > 1 else ''
        ops = []
        depth = 0
        cur = ''
        for ch in rest:
            if ch == '[':
                depth += 1
            if ch == ']':
                depth -= 1
            if ch == ',' and depth == 0:
                ops.append(cur)
                cur = ''
            else:
                cur += ch
        if cur.strip():
            ops.append(cur)
        mods = ''
        if ops:
            last = ops[-1].strip().split(None, 1)
            ops[-1] = last[0]
            if len(last) > 1:
                mods = last[1]
        ops = [o.strip() for o in ops]
        regs = [parse_operand(o) for o in ops]
        base = mn.replace('_e32', '').replace('_e64', '').replace('_dpp', '').replace('_sdwa', '')
        self.dpp = mn.endswith('_dpp')
        if mn.startswith('v_mfma'):
            self.cls = 'MFMA'
            self.passes = 8 if '32x32' in mn else 4
            self.w = set(regs[0])
            self.ra, self.rb, self.rc = tuple(regs[1]), tuple(regs[2]), tuple(regs[3])
            self.r = set(regs[1]) | set(regs[2]) | set(regs[3])
        elif mn.startswith('v_'):
            self.cls = 'TRANS' if base in TRANS else ('DOT' if base.startswith('v_dot') else 'VALU')
            ndst = 1
            if base.startswith(('v_add_co', 'v_sub_co', 'v_subrev_co', 'v_addc_co', 'v_subb_co', 'v_mad_u64_u32',
                                'v_div_scale')):
                ndst = 2
            for x in regs[:ndst]:
                self.w |= set(x)
            for x in regs[ndst:]:
                self.r |= set(x)
            if base.startswith('v_permlane') and 'swap' in base:
                self.w |= set(regs[1])
                self.r |= set(regs[0])
            if base in ('v_fmac_f32', 'v_dot2c_f32_bf16', 'v_writelane_b32', 'v_pk_fmac_f16') or self.dpp:
                self.r |= set(regs[0])
            if base == 'v_cndmask_b32' and len(ops) == 3:
                self.r |= {('s', 106), ('s', 107)}
            if base.startswith('v_cmpx'):
                self.w |= {('s', 126), ('s', 127)}
            if base in ('v_readlane_b32', 'v_writelane_b32') and len(regs) > 2:
                self.lanesel = set(regs[2])
            if base.startswith('v_dot2c'):
                self.rc = tuple(regs[0])
            elif base.startswith('v_dot'):
                self.rc = tuple(regs[3])
        elif mn.startswith(('buffer_', 'global_', 'flat_', 'scratch_')):
            self.cls = 'VMEM'
            islds = (' lds' in (' ' + mods)) or ('load_lds' in mn)
            if 'store' in mn:
                for x in regs:
                    self.r |= set(x)
                d = regs[0] if mn.startswith('buffer_') else regs[1]
                if 'x3' in mn or 'x4' in mn:
                    self.stdata = set(d)
            elif 'atomic' in mn:
                for x in regs:
                    self.r |= set(x)
                if 'sc0' in mods:
                    self.w |= set(regs[0])
            elif mn in ('buffer_wbl2', 'buffer_inv'):
                pass
            elif islds:
                self.lds_dma = True
                for x in regs:
                    self.r |= set(x)
                self.r.add(('s', 124))
            else:
                self.w |= set(regs[0])
                for x in regs[1:]:
                    self.r |= set(x)
        elif mn.startswith('ds_'):
            self.cls = 'DS'
            if mn.startswith(('ds_write', 'ds_add', 'ds_max', 'ds_min')) and 'rtn' not in mn:
                for x in regs:
                    self.r |= set(x)
            else:
                self.w |= set(regs[0])
                for x in regs[1:]:
                    self.r |= set(x)
        elif mn.startswith('s_'):
            if mn.startswith(('s_load', 's_buffer_load', 's_memtime', 's_memrealtime', 's_atomic')):
                self.cls = 'SMEM'
                self.w |= set(regs[0])
                for x in regs[1:]:
                    self.r |= set(x)
            else:
                self.cls = 'SALU'
                if mn == 's_nop':
                    self.states = int(ops[0], 0) + 1
                elif mn.startswith(('s_cbranch', 's_branch')):
                    self.target = ops[0]
                elif mn.startswith(('s_cmp', 's_bitcmp', 's_waitcnt', 's_barrier', 's_setprio', 's_sleep', 's_endpgm',
                                    's_setpc', 's_setreg', 's_sendmsg')):
                    for x in regs:
                        self.r |= set(x)
                else:
                    self.w |= set(regs[0]) if regs else set()
                    for x in regs[1:]:
                        self.r |= set(x)
                    if 'saveexec' in mn:
                        self.w |= {('s', 126), ('s', 127)}
        else:
            raise ValueError('unknown instruction: ' + text)


def is_valu(i):
    return i.cls in ('VALU', 'TRANS', 'DOT')


def need_states(p, c):
    need = 0
    pv = is_valu(p)
    if pv:
        wv = {x for x in p.w if x[0] in 'va'}
        ws = {x for x in p.w if x[0] == 's'}
        if c.cls == 'MFMA' and (wv & c.r):
            need = max(need, 2)
        if p.cls == 'TRANS' and (wv & c.r) and c.cls != 'TRANS':
            need = max(need, 1)
        if p.cls == 'DOT':
            touched = wv & (c.r | c.w)
            if touched:
                if c.mn == p.mn and not (wv & (c.r - set(c.rc))):
                    pass
                else:
                    need = max(need, 3)
        if is_valu(c):
            b = c.mn.replace('_e32', '').replace('_e64', '')
            if (wv & c.r):
                if b.startswith(('v_readlane', 'v_readfirstlane')):
                    need = max(need, 1)
                if c.dpp or b.startswith('v_permlane'):
                    need = max(need, 2)
            if ws & c.r:
                need = max(need, 2)
            if ws & c.lanesel:
                need = max(need, 4)
            if ('s', 126) in ws:
                need = max(need, 5 if c.dpp else 4)
        if c.cls == 'MFMA' and ('s', 126) in ws:
            need = max(need, 4)
        if c.cls == 'VMEM' and (ws & c.r):
            need = max(need, 5)
    if p.cls == 'MFMA':
        big = 12 if p.passes == 8 else 8
        if c.cls == 'MFMA':
            if p.w & (set(c.ra) | set(c.rb)):
                need = max(need, big)
            if p.w & set(c.rc):
                if set(c.rc) == p.w and c.passes == p.passes:
                    pass
                else:
                    need = max(need, big - 2)
            if (p.w & c.w) and not (set(c.rc) == p.w):
                need = max(need, big - 2)
        elif is_valu(c):
            if p.w & (c.r | c.w):
                need = max(need, big)
            if set(p.rc) & c.w:
                need = max(need, 7 if p.passes == 8 else 3)
        elif c.cls in ('VMEM', 'DS'):
            if p.w & (c.r | c.w):
                need = max(need, big)
    if p.cls == 'SALU' and ('s', 124) in p.w and (c.lds_dma or 'addtid' in c.mn):
        need = max(need, 1)
    if p.cls == 'VMEM' and p.stdata:
        if p.stdata & c.w:
            need = max(need, 2 if is_valu(c) else 1)
    return need


LOOKBACK = 24


class Asm:
    def __init__(self):
        self.ins = []
        self.autopad = True
        self.npad = 0

    def raw(self, text):
        self.ins.append(Ins(text))

    def comment(self, text):
        self.ins.append(Ins('; ' + text))

    def label(self, name):
        self.ins.append(Ins(name + ':'))

    def __call__(self, text):
        for line in text.strip().split('\n'):
            line = line.strip()
            if not line:
                continue
            i = Ins(line)
            if self.autopad and i.states > 0:
                pad = self._needed(i)
                while pad > 0:
                    n = min(pad, 16)
                    self.ins.append(Ins('s_nop %d' % (n - 1)))
                    self.npad += n
                    pad -= n
            self.ins.append(i)

    def _needed(self, c):
        dist = 0
        pad = 0
        for p in reversed(self.ins):
            if p.cls in ('DIR',):
                continue
            if p.cls == 'LABEL':
                continue
            if p.mn in ('s_branch', 's_endpgm', 's_setpc_b64'):
                break
            n = need_states(p, c)
            if n > dist:
                pad = max(pad, n - dist)
            dist += p.states
            if dist >= LOOKBACK:
                break
        return pad

    def check_branches(self):
        labels = {}
        for k, i in enumerate(self.ins):
            if i.label:
                labels[i.label] = k
        probs = []
        for k, i in enumerate(self.ins):
            if i.target and i.target in labels:
                before = []
                d = 0
                j = k
                while j >= 0 and d < LOOKBACK:
                    p = self.ins[j]
                    if p.states > 0:
                        if j != k and p.mn in ('s_branch', 's_endpgm', 's_setpc_b64'):
                            break
                        before.append(p)
                        d += p.states
                    j -= 1
                j = labels[i.target]
                dc = 0
                while j < len(self.ins) and dc < LOOKBACK:
                    c = self.ins[j]
                    if c.states > 0:
                        dist = dc
                        for p in before:
                            n = need_states(p, c)
                            if n > dist:
                                probs.append((p.text, c.text, n, dist))
                            dist += p.states
                        dc += c.states
                        if c.mn in ('s_branch', 's_endpgm', 's_setpc_b64'):
                            break
                    j += 1
        return probs

    def text(self):
        out = []
        for i in self.ins:
            if i.cls == 'LABEL' or i.text.startswith('.') or i.text.startswith(';'):
                out.append(i.text)
            else:
                out.append('    ' + i.text)
        return '\n'.join(out) + '\n'


class Cnt:
    def __init__(self, name, maxv):
        self.name = name
        self.maxv = maxv
        self.q = []

    def issue(self, tag):
        self.q.append(tag)

    def need(self, tags):
        if not isinstance(tags, (list, tuple, set)) or (isinstance(tags, tuple) and tags and not isinstance(tags[0], tuple)):
            tags = [tags]
        tags = set(tags)
        last = -1
        for k, t in enumerate(self.q):
            if t in tags:
                last = k
        if last < 0:
            return None
        n = len(self.q) - 1 - last
        self.q = self.q[last + 1:]
        return min(n, self.maxv)

    def wait(self, a, tags):
        n = self.need(tags)
        if n is not None:
            a('s_waitcnt %s(%d)' % (self.name, n))

    def drain(self, a):
        if self.q:
            a('s_waitcnt %s(0)' % self.name)
            self.q = []


def vr(b, n=1):
    return 'v%d' % b if n == 1 else 'v[%d:%d]' % (b, b + n - 1)


def ar(b, n=1):
    return 'a%d' % b if n == 1 else 'a[%d:%d]' % (b, b + n - 1)


def sr(b, n=1):
    return 's%d' % b if n == 1 else 's[%d:%d]' % (b, b + n - 1)
```

```python
import sys, os
sys.path.insert(0, os.path.dirname(os.path.abspath(__file__)))
from asmlib import *

NAME = 'recurrent_scan__sliding_block_cached__moe_arch_mod__prompt'
KA_X, KA_K, KA_V, KA_WQ, KA_WO, KA_BX, KA_WR, KA_WG, KA_WU, KA_WD, KA_OUT, KA_DBG, KA_WS = [8 * i for i in range(13)]
XNF_OFF = 0
OF_OFF = 4 << 20
G_OFF = 20 << 20
RKEY_OFF = 28 << 20
YP_OFF = 29 << 20

LOG2E = 1.4426950408889634
import struct


def f2u(f):
    return struct.unpack('<I', struct.pack('<f', f))[0]


def srd(a, d, base, nbytes, off=0):
    if off:
        a('s_add_u32 s%d, s%d, 0x%x' % (d, base, off))
        a('s_addc_u32 s%d, s%d, 0' % (d + 1, base + 1))
    else:
        a('s_mov_b32 s%d, s%d' % (d, base))
        a('s_mov_b32 s%d, s%d' % (d + 1, base + 1))
    a('s_mov_b32 s%d, 0x%x' % (d + 2, nbytes))
    a('s_mov_b32 s%d, 0x00020000' % (d + 3))


def wave_reduce(a, op, v):
    for sh in (1, 2, 4, 8):
        a('%s_dpp v%d, v%d, v%d row_shr:%d row_mask:0xf bank_mask:0xf' % (op, v, v, v, sh))
    a('%s_dpp v%d, v%d, v%d row_bcast:15 row_mask:0xa bank_mask:0xf' % (op, v, v, v))
    a('%s_dpp v%d, v%d, v%d row_bcast:31 row_mask:0xc bank_mask:0xf' % (op, v, v, v))


def kernel_header(a, name):
    a.raw('.globl %s' % name)
    a.raw('.p2align 8')
    a.raw('.type %s,@function' % name)
    a.label(name)


def kernel_desc(name, vgpr, sgpr, accum):
    return '''.amdhsa_kernel %s
  .amdhsa_next_free_vgpr %d
  .amdhsa_next_free_sgpr %d
  .amdhsa_accum_offset %d
  .amdhsa_group_segment_fixed_size 0
  .amdhsa_kernarg_size 104
  .amdhsa_user_sgpr_count 2
  .amdhsa_user_sgpr_kernarg_segment_ptr 1
  .amdhsa_system_sgpr_workgroup_id_x 1
  .amdhsa_float_denorm_mode_32 3
.end_amdhsa_kernel
''' % (name, vgpr, sgpr, accum)


def gen_k1(a):
    name = 'ln_kernel'
    kernel_header(a, name)
    a('s_cmp_ge_u32 s2, 512')
    a('s_cbranch_scc1 L_k1_end')
    a('s_load_dwordx2 s[4:5], s[0:1], %d' % KA_X)
    a('s_load_dwordx2 s[6:7], s[0:1], %d' % KA_WR)
    a('s_load_dwordx2 s[8:9], s[0:1], %d' % KA_WS)
    a('v_lshrrev_b32 v1, 6, v0')
    a('v_and_b32 v2, 63, v0')
    a('v_readfirstlane_b32 s3, v1')
    a('v_lshlrev_b32 v3, 4, v2')
    a('v_lshlrev_b32 v4, 9, v2')
    a('s_lshl_b32 s10, s2, 2')
    a('s_add_u32 s10, s10, s3')
    a('s_lshl_b32 s11, s10, 11')
    a('s_waitcnt lgkmcnt(0)')
    srd(a, 12, 4, 2048 * 1024 * 2)
    srd(a, 16, 6, 2048)
    srd(a, 20, 8, 4 << 20, XNF_OFF)
    srd(a, 24, 8, 4 << 20, G_OFF)
    srd(a, 28, 8, 8192, RKEY_OFF)
    a('buffer_load_dwordx4 v[8:11], v3, s[12:15], s11 offen')
    a('buffer_load_dwordx4 v[12:15], v3, s[12:15], s11 offen offset:1024')
    a('buffer_load_dwordx4 v[16:19], v3, s[16:19], 0 offen')
    a('buffer_load_dwordx4 v[20:23], v3, s[16:19], 0 offen offset:1024')
    a('s_lshr_b32 s32, s10, 5')
    a('s_lshl_b32 s32, s32, 16')
    a('s_and_b32 s33, s10, 31')
    a('s_lshl_b32 s33, s33, 4')
    a('s_add_u32 s32, s32, s33')
    a('s_add_u32 s33, s32, 32768')
    a('s_mov_b32 s40, 0xffff0000')
    X = 24
    a('s_waitcnt vmcnt(2)')
    for i in range(8):
        a('v_lshlrev_b32 v%d, 16, v%d' % (X + 2 * i, 8 + i))
        a('v_and_b32 v%d, s40, v%d' % (X + 2 * i + 1, 8 + i))
    a('v_add_f32 v5, v%d, v%d' % (X, X + 1))
    a('v_add_f32 v6, v%d, v%d' % (X + 2, X + 3))
    for i in range(4, 16, 2):
        a('v_add_f32 v5, v5, v%d' % (X + i))
        a('v_add_f32 v6, v6, v%d' % (X + i + 1))
    a('v_add_f32 v5, v5, v6')
    wave_reduce(a, 'v_add_f32', 5)
    a('v_mul_f32 v5, 0x%x, v5' % f2u(1.0 / 1024))
    a('v_readlane_b32 s34, v5, 63')
    a('v_subrev_f32 v40, s34, v%d' % X)
    a('v_subrev_f32 v41, s34, v%d' % (X + 1))
    a('v_mul_f32 v6, v40, v40')
    a('v_mul_f32 v7, v41, v41')
    for i in range(2, 16, 2):
        a('v_subrev_f32 v40, s34, v%d' % (X + i))
        a('v_subrev_f32 v41, s34, v%d' % (X + i + 1))
        a('v_fmac_f32 v6, v40, v40')
        a('v_fmac_f32 v7, v41, v41')
    a('v_add_f32 v6, v6, v7')
    wave_reduce(a, 'v_add_f32', 6)
    a('v_mul_f32 v6, 0x%x, v6' % f2u(1.0 / 1024))
    a('v_cvt_pk_bf16_f32 v7, v5, v6')
    a('v_and_b32 v6, s40, v7')
    a('v_lshlrev_b32 v5, 16, v7')
    a('v_add_f32 v6, 0x%x, v6' % f2u(1e-5))
    a('v_cvt_pk_bf16_f32 v6, v6, v6')
    a('v_and_b32 v6, s40, v6')
    a('v_sqrt_f32 v6, v6')
    a('v_cvt_pk_bf16_f32 v6, v6, v6')
    a('v_and_b32 v6, s40, v6')
    a('v_rcp_f32 v7, v6')
    a('v_fma_f32 v40, -v6, v7, 1.0')
    a('v_fma_f32 v7, v40, v7, v7')
    a('v_readlane_b32 s35, v5, 63')
    a('v_readlane_b32 s36, v7, 63')
    a('s_mov_b32 s37, 0x%x' % f2u(-LOG2E))
    a('v_mov_b32 v5, 0')
    a('v_mov_b32 v6, 0')
    a('s_waitcnt vmcnt(0)')
    XN = 44
    GG = 52
    for i in range(8):
        x0, x1 = X + 2 * i, X + 2 * i + 1
        a('v_subrev_f32 v%d, s35, v%d' % (x0, x0))
        a('v_subrev_f32 v%d, s35, v%d' % (x1, x1))
        a('v_cvt_pk_bf16_f32 v40, v%d, v%d' % (x0, x1))
        a('v_lshlrev_b32 v%d, 16, v40' % x0)
        a('v_and_b32 v%d, s40, v40' % x1)
        a('v_mul_f32 v%d, s36, v%d' % (x0, x0))
        a('v_mul_f32 v%d, s36, v%d' % (x1, x1))
        a('v_cvt_pk_bf16_f32 v%d, v%d, v%d' % (XN + i, x0, x1))
        a('v_lshlrev_b32 v%d, 16, v%d' % (x0, XN + i))
        a('v_and_b32 v%d, s40, v%d' % (x1, XN + i))
        a('v_lshlrev_b32 v40, 16, v%d' % (16 + i))
        a('v_and_b32 v41, s40, v%d' % (16 + i))
        a('v_fmac_f32 v5, v%d, v40' % x0)
        a('v_fmac_f32 v6, v%d, v41' % x1)
        a('v_mul_f32 v40, s37, v%d' % x0)
        a('v_mul_f32 v41, s37, v%d' % x1)
        a('v_exp_f32 v40, v40')
        a('v_exp_f32 v41, v41')
        a('v_add_f32 v40, 1.0, v40')
        a('v_add_f32 v41, 1.0, v41')
        a('v_rcp_f32 v40, v40')
        a('v_rcp_f32 v41, v41')
        a('v_mul_f32 v40, v40, v%d' % x0)
        a('v_mul_f32 v41, v41, v%d' % x1)
        a('v_cvt_pk_bf16_f32 v%d, v40, v41' % (GG + i))
    a('buffer_store_dwordx4 v[%d:%d], v4, s[20:23], s32 offen' % (XN, XN + 3))
    a('buffer_store_dwordx4 v[%d:%d], v4, s[20:23], s33 offen' % (XN + 4, XN + 7))
    a('buffer_store_dwordx4 v[%d:%d], v3, s[24:27], s11 offen' % (GG, GG + 3))
    a('buffer_store_dwordx4 v[%d:%d], v3, s[24:27], s11 offen offset:1024' % (GG + 4, GG + 7))
    a('v_add_f32 v5, v5, v6')
    wave_reduce(a, 'v_add_f32', 5)
    a('v_cvt_pk_bf16_f32 v6, v5, v5')
    a('v_and_b32 v6, s40, v6')
    a('v_ashrrev_i32 v7, 31, v6')
    a('v_or_b32 v7, 0x80000000, v7')
    a('v_xor_b32 v6, v6, v7')
    a('v_and_b32 v6, s40, v6')
    a('s_sub_u32 s38, 0xffff, s10')
    a('v_or_b32 v6, s38, v6')
    a('v_cmp_u_f32 vcc, v5, v5')
    a('v_cndmask_b32 v6, v6, 0, vcc')
    a('v_readlane_b32 s38, v6, 63')
    a('s_lshl_b32 s39, s10, 2')
    a('v_mov_b32 v7, s39')
    a('v_mov_b32 v6, s38')
    a('s_mov_b64 exec, 1')
    a('buffer_store_dword v6, v7, s[28:31], 0 offen')
    a.label('L_k1_end')
    a('s_endpgm')
    return name, (512, 256, 0), kernel_desc(name, 64, 48, 64)


def build(kernels, path):
    a = Asm()
    hdr = []
    descs = []
    infos = []
    a.raw('.amdgcn_target "amdgcn-amd-amdhsa--gfx950"')
    a.raw('.text')
    for k in kernels:
        name, (grid, block, lds), desc = k(a)
        infos.append((name, grid, block, lds))
        descs.append(desc)
    probs = a.check_branches()
    for p in probs:
        print('BRANCH HAZARD', p)
    out = '; generated by gen/gen.py\n'
    for name, grid, block, lds in infos:
        out += '; @launch kernel=%s grid=(%d,1,1) block=(%d,1,1) lds=%d\n' % (name, grid, block, lds)
    out += a.text()
    out += '.section .rodata,"a"\n'
    for d in descs:
        out += '.p2align 6\n' + d
    open(path, 'w').write(out)
    print('wrote', path, len(out), 'bytes; nop states inserted:', a.npad)


if __name__ == '__main__':
    build([gen_k1], 'cdna_kernels/%s.s' % NAME)
```
